```python
import torch

def _softmax(x, axis=-1):
    return torch.softmax(x, dim=axis)
def _gelu(x):
    return torch.nn.functional.gelu(x, approximate="tanh")
def _silu(x):
    return torch.nn.functional.silu(x)
def _sigmoid(x):
    return torch.sigmoid(x)
def _layernorm(x, axis=-1, eps=1e-5):
    m = x.mean(dim=axis, keepdim=True)
    v = x.var(dim=axis, keepdim=True, unbiased=False)
    return (x - m) / torch.sqrt(v + eps)
def _scatter_add(tgt, idx, src, axis=0):
    return tgt.clone().index_add_(axis, idx, src)
def _segment_sum(src, seg, n):
    out = torch.zeros((n,) + src.shape[1:], dtype=src.dtype)
    return out.index_add_(0, seg, src)
def _pad(x, pw):
    flat = tuple(v for pair in reversed(pw) for v in pair)
    return torch.nn.functional.pad(x, flat)

kernel_name = 'sequential_preLN__ssm_conv_h3__glu_gated_swiglu__prompt'

def setup_inputs():

    _w = (lambda a: (lambda t: t.to(torch.bfloat16) if t.is_floating_point() else t)(torch.as_tensor(a)))
    def _A_setup():
        B, S, D = 1, 2048, 640
        ks = 4
        return {
            "q": _w((lambda *s: torch.randn(*s, dtype=torch.bfloat16) * 0.05)(B, S, D)),
            "k": _w((lambda *s: torch.randn(*s, dtype=torch.bfloat16) * 0.2)(B, S, D)),
            "v": _w((lambda *s: torch.randn(*s, dtype=torch.bfloat16) * 0.2)(B, S, D)),
            "shift_k": _w((lambda *s: torch.randn(*s, dtype=torch.bfloat16) * 0.2)(D, ks) * 0.5),
            "ssm_k": _w((lambda *s: torch.randn(*s, dtype=torch.bfloat16) * 0.4)(D, S) * (1.0 / S ** 0.5)),
            "ssm_D": _w((lambda *s: torch.randn(*s, dtype=torch.bfloat16) * 0.2)(D)),
        }
    _A_in = _A_setup()

    def _B_setup():
        B, S, D, F = 1, 2048, 640, 1728
        return {
            "x": _w((lambda *s: torch.randn(*s, dtype=torch.bfloat16) * 0.05)(B, S, D)),
            "w1": _w((lambda *s: torch.randn(*s, dtype=torch.bfloat16) * 0.2)(D, F) * (2.0 / D) ** 0.5),
            "w3": _w((lambda *s: torch.randn(*s, dtype=torch.bfloat16) * 0.2)(D, F) * (2.0 / D) ** 0.5),
            "w2": _w((lambda *s: torch.randn(*s, dtype=torch.bfloat16) * 0.2)(F, D) * (2.0 / F) ** 0.5),
        }
    _B_in = _B_setup()

    return {
        "A_q": _A_in["q"],
        "A_k": _A_in["k"],
        "A_v": _A_in["v"],
        "A_shift_k": _A_in["shift_k"],
        "A_ssm_k": _A_in["ssm_k"],
        "A_ssm_D": _A_in["ssm_D"],
        "B_x": _B_in["x"],
        "B_w1": _B_in["w1"],
        "B_w3": _B_in["w3"],
        "B_w2": _B_in["w2"],
    }

def reference(A_q, A_k, A_v, A_shift_k, A_ssm_k, A_ssm_D, B_x, B_w1, B_w3, B_w2):
    def _A_ref(q, k, v, shift_k, ssm_k, ssm_D):
        B, S, D = q.shape
        ks = shift_k.shape[-1]
        k_pad = _pad(k, ((0, 0), (ks - 1, 0), (0, 0)))
        k_shift = torch.zeros_like(k)
        for t in range(ks):
            k_shift = k_shift + k_pad[:, t:t + S, :] * shift_k[:, ks - 1 - t][None, None, :]
        kv = k_shift * v
        L = 2 * S
        kv_pad = _pad(kv, ((0, 0), (0, S), (0, 0)))
        kf_pad = _pad(ssm_k, ((0, 0), (0, S)))
        kv_f = (lambda x, axes=(-2,-1): torch.fft.rfft2(x.float(), dim=axes))(kv_pad[:, None, :, :], axes=(1, 2))
        kf_f = (lambda x, axes=(-2,-1): torch.fft.rfft2(x.float(), dim=axes))(kf_pad[:, None, :], axes=(1, 2))
        kf_f = (lambda x, *d: x.permute(*d))(kf_f, 1, 2, 0)
        y_f = kv_f * kf_f[None, :, :, :]
        y = (lambda x, s, axes=(-2,-1): torch.fft.irfft2(x, s=s, dim=axes).to(torch.bfloat16))(y_f, (1, L), axes=(1, 2))[:, 0, :S, :]
        y = y + kv * ssm_D[None, None, :]
        return q * y

    def _B_ref(x, w1, w3, w2):
        gate = torch.einsum("bsd,df->bsf", x, w1)
        up = torch.einsum("bsd,df->bsf", x, w3)
        h = _silu(gate) * up
        out = torch.einsum("bsf,fd->bsd", h, w2)
        return out

    x = A_q
    h = x + _A_ref(_layernorm(x, axis=-1), A_k, A_v, A_shift_k, A_ssm_k, A_ssm_D)
    h2 = h + _B_ref(_layernorm(h, axis=-1), B_w1, B_w3, B_w2)
    return h2
```

```python
S, D, F = 2048, 640, 1728
UX_P = 32896
WS_UX, WS_A, WS_B, WS_ST, WS_CS, WS_H8, WS_HM = 0, 0x510000, 0x512000, 0x514000, 0x518000, 0x520000, 0x800000
WS_TS = 0x1000000
H8_P = 33280
UX_SZ, H8_SZ, HM_SZ = UX_P * 160, H8_P * 80, 64 * 108 * 1024
import sys
STAMP = False
def opt(n): return '--' + n in sys.argv

class K:
    def __init__(s, name, idx):
        s.name, s.idx, s.L = name, idx, []
    def __call__(s, txt):
        for l in txt.strip('\n').split('\n'):
            l = l.strip()
            if l: s.L.append(l if l.endswith(':') else '    ' + l)
    def srd(s, r, base, size, off=0):
        if off:
            s(f's_add_u32 s{r}, s{base}, {off:#x}\ns_addc_u32 s{r+1}, s{base+1}, 0')
        elif r != base:
            s(f's_mov_b32 s{r}, s{base}\ns_mov_b32 s{r+1}, s{base+1}')
        s(f's_mov_b32 s{r+2}, {size:#x}\ns_mov_b32 s{r+3}, 0x20000')
    def stamp(s, i):
        if STAMP: s(f's_memrealtime s[{84+2*i}:{85+2*i}]')
        if STAMP and i in (1, 2): s(f's_memtime s[{94+2*i}:{95+2*i}]')
    def stamp_out(s, n):
        if not STAMP: return
        s(f's_memrealtime s[{84+2*n}:{85+2*n}]\ns_load_dwordx2 s[76:77], s[0:1], 96\ns_waitcnt lgkmcnt(0)')
        s.srd(76, 76, 0x100000, WS_TS + s.idx * 0x10000)
        s('s_lshl_b32 s80, s2, 3\ns_add_u32 s80, s80, s81\ns_lshl_b32 s80, s80, 5\nv_mov_b32 v1, s80')
        for i in range(n + 1):
            s(f'v_mov_b32 v2, s{84+2*i}\nbuffer_store_dword v2, v1, s[76:79], 0 offen offset:{4*i}')
        if n >= 3: s('s_sub_u32 s80, s98, s96\nv_mov_b32 v2, s80\nbuffer_store_dword v2, v1, s[76:79], 0 offen offset:28')
    def text(s):
        return (f'.globl {s.name}\n.p2align 8\n.type {s.name},@function\n{s.name}:\n' + '\n'.join(s.L) + '\n')
    def desc(s, vg):
        return (f'.amdhsa_kernel {s.name}\n  .amdhsa_next_free_vgpr {vg}\n  .amdhsa_next_free_sgpr 102\n'
                f'  .amdhsa_accum_offset {min(256, (vg + 3) // 4 * 4)}\n  .amdhsa_group_segment_fixed_size 0\n'
                f'  .amdhsa_kernarg_size 104\n  .amdhsa_user_sgpr_count 2\n  .amdhsa_user_sgpr_kernarg_segment_ptr 1\n'
                f'  .amdhsa_system_sgpr_workgroup_id_x 1\n.end_amdhsa_kernel\n')

def vr(a, n=1):
    return f'v{a}' if n == 1 else f'v[{a}:{a+n-1}]'

def weave(main, fill, start=0, per=1):
    out, fill = [], list(fill)
    for i, m in enumerate(main):
        out.append(m)
        if i >= start:
            for _ in range(per):
                if fill: out.append(fill.pop(0))
    return out + fill
```

```python
from common import *
def gen():
    k = K('prep_kernel', 0)
    k.stamp(0)
    k(f'''
    s_cmp_ge_u32 s2, 256
    s_cbranch_scc1 k0_end
    s_load_dwordx4 s[4:7], s[0:1], 0
    s_load_dwordx4 s[8:11], s[0:1], 16
    s_load_dwordx2 s[12:13], s[0:1], 96
    v_lshrrev_b32 v1, 6, v0
    s_and_b32 s3, s2, 7
    s_lshl_b32 s3, s3, 5
    v_readfirstlane_b32 s81, v1
    s_lshr_b32 s14, s2, 3
    s_add_u32 s3, s3, s14
    s_mul_i32 s14, s3, 10240
    s_waitcnt lgkmcnt(0)
    ''')
    k.srd(16, 4, S * D * 2)
    k('s_cmp_eq_u32 s81, 5\ns_cbranch_scc1 k0_stats')
    k.srd(20, 6, S * D * 2); k.srd(24, 8, S * D * 2); k.srd(28, 10, D * 8); k.srd(32, 12, UX_SZ, WS_UX)
    KR, VR, XR, SH, T, KF, U = 8, 19, 27, 36, 40, 48, 72
    k(f'''
    v_lshl_add_u32 v2, v0, 2, s14
    v_lshlrev_b32 v5, 4, v0
    v_add_u32 v3, 0xfffff100, v2
    v_add_u32 v4, 5120, v2
    buffer_load_dwordx4 {vr(SH,4)}, v5, s[28:31], 0 offen
    ''')
    for j in range(3): k(f'buffer_load_dword v{KR+j}, v3, s[20:23], 0 offen offset:{1280*j}')
    for base, srd in ((KR + 3, 20), (VR, 24), (XR, 16)):
        for j in range(8): k(f'buffer_load_dword v{base+j}, v{2 if j < 4 else 4}, s[{srd}:{srd+3}], 0 offen offset:{1280*(j&3)}')
    k(f'''
    s_lshr_b32 s15, s3, 1
    s_and_b32 s15, s15, 7
    s_lshl_b32 s15, s15, 4
    v_lshrrev_b32 v6, 1, v0
    v_and_b32 v7, 1, v0
    v_lshlrev_b32 v6, 7, v6
    v_lshl_or_b32 v6, v7, 5, v6
    v_xor_b32 v6, s15, v6
    v_xor_b32 v7, 16, v6
    v_xor_b32 v88, 64, v6
    v_xor_b32 v89, 0x50, v6
    v_and_b32 v1, 63, v0
    s_lshl_b32 s15, s81, 12
    v_lshl_add_u32 v90, v1, 4, s15
    v_lshrrev_b32 v91, 3, v1
    s_lshl_b32 s15, s81, 5
    v_add_u32 v91, s15, v91
    v_mul_u32_u24 v91, {UX_P}, v91
    v_and_b32 v1, 7, v1
    s_lshl_b32 s15, s3, 7
    v_lshl_add_u32 v1, v1, 4, s15
    v_add_u32 v91, v91, v1
    s_mov_b32 s36, 0xffff0000
    s_mov_b32 s37, 0x05040100
    s_mov_b32 s38, 0x07060302
    s_waitcnt vmcnt(27)
    ''')
    for j in range(4):
        for c in range(2):
            src = SH + 2 * c + (j >> 1)
            k(f'v_and_b32 v{T+2*j+c}, s36, v{src}' if j & 1 else f'v_lshlrev_b32 v{T+2*j+c}, 16, v{src}')
    k('s_waitcnt vmcnt(16)')
    for j in range(11):
        k(f'v_lshlrev_b32 v{KF+2*j}, 16, v{KR+j}\nv_and_b32 v{KF+2*j+1}, s36, v{KR+j}')
    for j in range(4):
        for t in range(8):
            a, b = vr(KF + 2 * (t + 3 - j), 2), vr(T + 2 * j, 2)
            k(f'v_pk_mul_f32 {vr(U+2*t,2)}, {a}, {b}' if j == 0 else f'v_pk_fma_f32 {vr(U+2*t,2)}, {a}, {b}, {vr(U+2*t,2)}')
    k('s_waitcnt vmcnt(8)')
    for t in range(8):
        k(f'v_lshlrev_b32 v{KF+2*t}, 16, v{VR+t}\nv_and_b32 v{KF+2*t+1}, s36, v{VR+t}')
    for t in range(8): k(f'v_pk_mul_f32 {vr(U+2*t,2)}, {vr(U+2*t,2)}, {vr(KF+2*t,2)}')
    P = 8
    for c in range(2):
        for i in range(4): k(f'v_cvt_pk_bf16_f32 v{P+4*c+i}, v{U+2*(7-2*i)+c}, v{U+2*(6-2*i)+c}')
    k(f'ds_write_b128 v6, {vr(P,4)}\nds_write_b128 v7, {vr(P+4,4)}\ns_waitcnt vmcnt(0)')
    for c in range(2):
        for i in range(4): k(f'v_perm_b32 v{KF+4*c+i}, v{XR+2*i+1}, v{XR+2*i}, s{37+c}')
    k(f'ds_write_b128 v88, {vr(KF,4)}\nds_write_b128 v89, {vr(KF+4,4)}')
    for i in range(4): k(f'ds_read_b128 {vr(U+4*i,4)}, v90 offset:{1024*i}')
    for i in range(4):
        k(f's_mov_b32 s15, {8*UX_P*i}\ns_waitcnt lgkmcnt({3-i})\nbuffer_store_dwordx4 {vr(U+4*i,4)}, v91, s[32:35], s15 offen')
    k.stamp_out(1)
    k('s_endpgm\nk0_stats:')
    k.srd(32, 12, 0x8000, WS_A)
    k(f'''
    v_and_b32 v1, 63, v0
    v_lshrrev_b32 v2, 3, v1
    v_and_b32 v3, 7, v1
    v_mul_u32_u24 v4, 1280, v2
    v_lshl_add_u32 v4, v3, 4, v4
    ''')
    for i in range(10): k(f'buffer_load_dwordx4 {vr(8+4*i,4)}, v4, s[16:19], s14 offen offset:{128*i}')
    k(f'''
    s_lshl_b32 s15, s3, 5
    v_lshl_add_u32 v5, v2, 2, s15
    v_and_b32 v3, 1, v3
    v_lshlrev_b32 v52, 1, v5
    v_lshl_add_u32 v52, v3, 2, v52
    v_add_u32 v52, 0x4000, v52
    v_mov_b32 v53, -1
    v_lshl_add_u32 v5, v3, 13, v5
    v_cmp_eq_u32 vcc, 1, v3
    s_mov_b32 s36, 0x3f803f80
    v_mov_b32 v6, 0
    v_mov_b32 v7, 0
    ''')
    for i in range(10):
        k(f's_waitcnt vmcnt({9-i})')
        for j in range(4): k(f'v_dot2c_f32_bf16 v6, s36, v{8+4*i+j}\nv_dot2c_f32_bf16 v7, v{8+4*i+j}, v{8+4*i+j}')
    k('buffer_store_dword v53, v52, s[32:35], 0 offen\ns_nop 2')
    for d in ('quad_perm:[1,0,3,2]', 'quad_perm:[2,3,0,1]', 'row_half_mirror'):
        k(f'v_add_f32_dpp v6, v6, v6 {d} row_mask:0xf bank_mask:0xf\nv_add_f32_dpp v7, v7, v7 {d} row_mask:0xf bank_mask:0xf\ns_nop 0')
    k(f'''
    v_mul_f32 v6, {1/640!r}, v6
    v_mul_f32 v7, {1/640!r}, v7
    v_fma_f32 v7, -v6, v6, v7
    v_max_f32 v7, 0, v7
    v_add_f32 v7, 0x3727c5ac, v7
    v_rsq_f32 v7, v7
    s_nop 0
    v_mul_f32 v6, -v6, v7
    v_cndmask_b32 v6, v7, v6, vcc
    buffer_store_dword v6, v5, s[32:35], 0 offen
    ''')
    k.stamp_out(1)
    k('k0_end:\ns_endpgm')
    return k, 96, (256, 384, 20480)
```

```python
from common import *
PAD, FL, FP, C1 = 512, 512 + 4096 + 32768, 8448, 4160
IMG = PAD + 4096
ABL = FL + 4 * FP
LDS = ABL + 16384
def gen():
    k = K('conv_kernel', 1)
    k.stamp(0)
    k(f'''
    s_cmp_ge_u32 s2, 160
    s_cbranch_scc1 k1_aux
    s_load_dwordx4 s[4:7], s[0:1], 32
    s_load_dwordx2 s[12:13], s[0:1], 96
    v_lshrrev_b32 v1, 6, v0
    s_and_b32 s3, s2, 7
    s_mul_i32 s3, s3, 20
    v_readfirstlane_b32 s81, v1
    s_lshr_b32 s14, s2, 3
    s_add_u32 s3, s3, s14
    v_and_b32 v1, 63, v0
    v_lshlrev_b32 v2, 4, v1
    s_lshl_b32 s14, s3, 2
    s_add_u32 s14, s14, s81
    s_lshl_b32 s15, s14, 12
    s_mul_i32 s40, s81, {FP}
    s_add_u32 s40, s40, {FL}
    s_add_u32 s41, s40, 32
    s_mov_b32 m0, s41
    v_add_u32 v3, 2, v2
    s_waitcnt lgkmcnt(0)
    ''')
    k.srd(16, 4, D * S * 2)
    for i in range(4): k(f'buffer_load_dwordx4 v2, s[16:19], s15 offen offset:{1024*i} lds')
    k(f's_add_u32 s41, s41, {C1}\ns_mov_b32 m0, s41')
    k.srd(20, 12, UX_SZ, WS_UX)
    for i in range(4): k(f'buffer_load_dwordx4 v3, s[16:19], s15 offen offset:{1024*i} lds')
    k(f'''
    s_lshl_b32 s42, s81, 13
    s_add_u32 s41, s42, {IMG}
    s_mov_b32 m0, s41
    s_mul_i32 s43, s3, {UX_P}
    s_add_u32 s43, s43, s42
    ''')
    k.srd(24, 6, D * 2)
    k('buffer_load_ushort v4, off, s[16:19], s15\ns_lshl_b32 s14, s14, 1\nbuffer_load_ushort v5, off, s[24:27], s14')
    for i in range(4): k(f'buffer_load_dwordx4 v2, s[20:23], s43 offen offset:{1024*i} lds')
    k(f's_add_u32 s41, s41, 4096\ns_mov_b32 m0, s41\ns_add_u32 s43, s43, 4096')
    k.srd(28, 12, 0x4000, WS_A)
    for i in range(4): k(f'buffer_load_dwordx4 v2, s[20:23], s43 offen offset:{1024*i} lds')
    k(f's_lshl_b32 s42, s81, 12\ns_add_u32 s41, s42, {ABL}\ns_mov_b32 m0, s41')
    k.srd(32, 12, H8_SZ, WS_H8)
    for i in range(4): k(f'buffer_load_dwordx4 v2, s[28:31], s42 offen offset:{1024*i} lds')
    ACC, FR, AB, BB, TB = 16, 48, 8, 12, 13
    for i in range(32): k(f'v_mov_b32 v{ACC+i}, 0')
    k(f'''
    v_lshlrev_b32 v6, 4, v0
    ds_write_b128 v6, {vr(ACC,4)} offset:{PAD}
    v_and_b32 v6, 1, v1
    v_lshl_add_u32 v6, v6, 4, s40
    ds_write_b128 v6, {vr(ACC,4)}
    ds_write_b128 v6, {vr(ACC,4)} offset:{C1}
    v_and_b32 v14, 15, v1
    v_lshrrev_b32 v15, 4, v1
    v_and_b32 v6, 1, v1
    v_xor_b32 v6, 1, v6
    v_mul_u32_u24 v6, {C1-2}, v6
    v_lshl_add_u32 v7, v15, 3, v14
    v_lshl_add_u32 v6, v7, 1, v6
    v_add3_u32 v{AB}, v6, s40, 2
    v_add_u32 v{AB+1}, 1024, v{AB}
    v_add_u32 v{AB+2}, 2048, v{AB}
    v_add_u32 v{AB+3}, 3072, v{AB}
    v_lshlrev_b32 v{TB}, 1, v14
    v_sub_u32 v{TB}, v{TB}, v15
    v_add_u32 v{TB}, 33, v{TB}
    v_mov_b32 v6, s40
    s_waitcnt vmcnt(12)
    ds_write_b16 v6, v4 offset:{C1+30}
    v_lshlrev_b32 v4, 16, v5
    ''')
    baddr = [f'v_bfe_u32 v{BB}, v{TB}, 1, 3', f'v_xor_b32 v{BB}, s81, v{BB}', f'v_lshlrev_b32 v{BB}, 4, v{BB}',
             f'v_lshl_add_u32 v{BB}, v{TB}, 7, v{BB}', f'v_add_u32 v{TB}, -4, v{TB}']
    def reads(st):
        a, b, r = FR + 64 * st, FR + 64 * st + 32, []
        for q in range(8):
            r.append(f'ds_read_b128 {vr(b+4*q,4)}, v{BB} offset:{PAD+4096*q}')
            for h in range(2):
                o = 128 * (q & 1) + 2 * h
                r.append(f'ds_read2_b32 {vr(a+4*q+2*h,2)}, v{AB+(q>>1)} offset0:{o} offset1:{o+1}')
        return r + [f'v_add_u32 v{AB+i}, 64, v{AB+i}' for i in range(4)] + baddr
    def mfmas(st):
        a, b = FR + 64 * st, FR + 64 * st + 32
        o = [(q, m) for q in range(8) for m in range(8 - q)]
        o.remove((7, 0)); o.insert(1, (7, 0))
        return [f'v_mfma_f32_16x16x32_bf16 {vr(ACC+4*(q+m),4)}, {vr(a+4*q,4)}, {vr(b+4*m,4)}, {vr(ACC+4*(q+m),4)}' for q, m in o]
    k('\n'.join(baddr))
    k('s_waitcnt vmcnt(4) lgkmcnt(0)\ns_barrier')
    k.stamp(1)
    k('\n'.join(reads(0)))
    k('s_mov_b32 s44, 4\nk1_loop:')
    for st in range(2):
        k('s_waitcnt lgkmcnt(0)')
        k('\n'.join(weave(mfmas(st), reads(st ^ 1))))
    k('s_add_u32 s44, s44, -1\ns_cmp_lg_u32 s44, 0\ns_cbranch_scc1 k1_loop')
    k.stamp(2)
    k(f'''
    v_lshrrev_b32 v6, 1, v15
    v_lshl_add_u32 v6, v14, 1, v6
    v_and_b32 v7, 7, v14
    v_xor_b32 v7, s81, v7
    v_lshlrev_b32 v7, 4, v7
    v_lshl_add_u32 v6, v6, 7, v7
    v_and_b32 v7, 1, v15
    v_lshl_or_b32 v6, v7, 3, v6
    v_xor_b32 v8, 8, v6
    v_xor_b32 v9, 64, v6
    v_lshlrev_b32 v10, 4, v15
    v_lshl_add_u32 v10, v14, 6, v10
    v_lshrrev_b32 v11, 1, v10
    v_add_u32 v10, {ABL}, v10
    s_lshl_b32 s41, s81, 6
    s_add_u32 s41, s41, s40
    v_add_u32 v11, s41, v11
    v_mov_b32 v5, v4
    s_mov_b32 s36, 0xffff0000
    s_waitcnt vmcnt(0) lgkmcnt(0)
    s_barrier
    ''')
    def erd(n):
        r = FR + 12 * n
        return (f'ds_read_b64 {vr(r,2)}, v8 offset:{IMG+4096*n}\nds_read_b64 {vr(r+2,2)}, v9 offset:{IMG+4096*n}\n'
                f'ds_read_b128 {vr(r+4,4)}, v10 offset:{1024*n}\nds_read_b128 {vr(r+8,4)}, v10 offset:{8192+1024*n}')
    for n in range(3): k(erd(n))
    T = 160
    for n in range(8):
        r, y = FR + 12 * n, ACC + 4 * n
        cnt = 4 * min(2, 7 - n) + min(n, 2) if n else 8
        k(f's_waitcnt lgkmcnt({cnt})')
        if n + 3 < 8: k(erd(n + 3))
        k(f'''
        v_and_b32 v{T}, s36, v{r+1}
        v_lshlrev_b32 v{T+1}, 16, v{r+1}
        v_and_b32 v{T+2}, s36, v{r}
        v_lshlrev_b32 v{T+3}, 16, v{r}
        v_lshlrev_b32 v{T+4}, 16, v{r+2}
        v_and_b32 v{T+5}, s36, v{r+2}
        v_lshlrev_b32 v{T+6}, 16, v{r+3}
        v_and_b32 v{T+7}, s36, v{r+3}
        ''')
        for h in (0, 2): k(f'v_pk_fma_f32 {vr(y+h,2)}, {vr(T+h,2)}, v[4:5], {vr(y+h,2)}')
        for h in (0, 2): k(f'v_pk_fma_f32 {vr(r+4+h,2)}, {vr(T+4+h,2)}, {vr(r+4+h,2)}, {vr(r+8+h,2)}')
        for h in (0, 2): k(f'v_pk_fma_f32 {vr(y+h,2)}, {vr(r+4+h,2)}, {vr(y+h,2)}, {vr(T+4+h,2)}')
        k(f'v_cvt_pk_bf16_f32 v{y}, v{y}, v{y+1}\nv_cvt_pk_bf16_f32 v{y+1}, v{y+2}, v{y+3}')
        k(f'ds_write_b64 v11, {vr(y,2)} offset:{512*n}')
    k(f'''
    v_bfe_u32 v6, v1, 2, 2
    v_mul_u32_u24 v6, {FP+64}, v6
    v_and_b32 v7, 3, v1
    v_lshl_add_u32 v6, v7, 3, v6
    v_lshl_add_u32 v6, v15, 5, v6
    s_lshl_b32 s41, s81, 10
    v_add_u32 v6, s41, v6
    s_lshr_b32 s42, s3, 1
    s_mul_i32 s42, s42, {H8_P}
    s_and_b32 s43, s3, 1
    s_lshl_b32 s43, s43, 3
    s_add_u32 s42, s42, s43
    s_lshl_b32 s41, s81, 13
    s_add_u32 s42, s42, s41
    s_add_u32 s43, s42, 4096
    s_waitcnt lgkmcnt(0)
    s_barrier
    ''')
    for i in range(8): k(f'ds_read_b64_tr_b16 {vr(ACC+2*i,2)}, v6 offset:{FL+128*i}')
    for i in range(8):
        k(f's_waitcnt lgkmcnt({7-i})\nbuffer_store_dwordx2 {vr(ACC+2*i,2)}, v2, s[32:35], s{42+(i>>2)} offen offset:{1024*(i&3)}')
    k.stamp_out(3)
    k(f'''
    s_endpgm
    k1_aux:
    s_cmp_ge_u32 s2, 216
    s_cbranch_scc1 k1_pre
    s_sub_u32 s3, s2, 160
    s_and_b32 s14, s3, 1
    s_mul_i32 s14, s14, 14
    s_lshr_b32 s15, s3, 2
    s_add_u32 s14, s14, s15
    s_cmp_ge_u32 s14, 27
    s_cbranch_scc1 k1_end
    s_load_dwordx4 s[4:7], s[0:1], 56
    s_load_dwordx2 s[12:13], s[0:1], 96
    v_lshrrev_b32 v1, 3, v0
    v_and_b32 v2, 7, v0
    v_mul_u32_u24 v1, 3456, v1
    v_lshl_add_u32 v1, v2, 4, v1
    s_lshl_b32 s15, s14, 7
    s_bitcmp1_b32 s3, 1
    s_waitcnt lgkmcnt(0)
    s_cselect_b32 s16, s6, s4
    s_cselect_b32 s17, s7, s5
    s_cselect_b32 s40, {F*8}, 0
    ''')
    k.srd(16, 16, D * F * 2); k.srd(20, 12, F * 16, WS_CS)
    for i in range(20): k(f'buffer_load_dwordx4 {vr(16+4*i,4)}, v1, s[16:19], s15 offen\ns_add_u32 s15, s15, {32*3456}')
    k('s_mov_b32 s36, 0x3f80\ns_mov_b32 s37, 0x3f800000\nv_lshlrev_b32 v3, 5, v0\nv_lshlrev_b32 v4, 2, v0')
    for i in range(8): k(f'v_mov_b32 v{8+i}, 0')
    for i in range(20):
        k(f's_waitcnt vmcnt({19-i})')
        for j in range(8): k(f'v_dot2c_f32_bf16 v{8+j}, s{36+(j&1)}, v{16+4*i+(j>>1)}')
    k(f'''
    s_nop 2
    ds_write_b128 v3, v[8:11]
    ds_write_b128 v3, v[12:15] offset:16
    v_readfirstlane_b32 s81, v0
    s_waitcnt lgkmcnt(0)
    s_barrier
    s_cmp_lg_u32 s81, 0
    s_cbranch_scc1 k1_end
    ''')
    for i in range(16): k(f'ds_read2st64_b32 {vr(16+2*i,2)}, v4 offset0:{2*i} offset1:{2*i+1}')
    k('s_waitcnt lgkmcnt(0)')
    for w in (16, 8, 4, 2):
        for i in range(0, w, 2): k(f'v_pk_add_f32 {vr(16+i,2)}, {vr(16+i,2)}, {vr(16+w+i,2)}')
    k(f'''
    s_lshl_b32 s14, s14, 9
    s_add_u32 s14, s14, s40
    v_add_f32 v16, v16, v17
    v_cvt_pk_bf16_f32 v8, v16, v16
    v_lshlrev_b32 v17, 16, v8
    v_sub_f32 v16, v16, v17
    v_cvt_pk_bf16_f32 v9, v16, v16
    v_lshlrev_b32 v4, 3, v0
    buffer_store_dwordx2 v[8:9], v4, s[20:23], s14 offen
    ''')
    k.stamp_out(1)
    k(f'''
    s_endpgm
    k1_pre:
    s_cmp_ge_u32 s2, 250
    s_cbranch_scc1 k1_end
    s_load_dwordx2 s[16:17], s[0:1], 72
    s_sub_u32 s3, s2, 216
    s_lshl_b32 s3, s3, 16
    v_lshlrev_b32 v1, 7, v0
    s_add_u32 s14, s3, 0x8000
    s_waitcnt lgkmcnt(0)
    ''')
    k.srd(16, 16, D * F * 2)
    k('''
    buffer_load_dword v2, v1, s[16:19], s3 offen
    buffer_load_dword v3, v1, s[16:19], s14 offen
    s_waitcnt vmcnt(0)
    k1_end:
    s_endpgm''')
    return k, 176, (256, 256, LDS)
```

```python
from common import *
LDS = 65536
def gen():
    k = K('up_kernel', 2)
    k.stamp(0)
    CS, ST, A, H, ACC = 12, 22, 32, 64, 128
    k(f'''
    s_cmp_ge_u32 s2, 256
    s_cbranch_scc1 k2_end
    s_load_dwordx4 s[4:7], s[0:1], 56
    s_load_dwordx2 s[12:13], s[0:1], 96
    v_lshrrev_b32 v1, 6, v0
    s_and_b32 s3, s2, 7
    s_lshr_b32 s14, s2, 3
    v_readfirstlane_b32 s81, v1
    v_and_b32 v1, 63, v0
    s_cmp_lt_u32 s14, 4
    s_cbranch_scc1 k2_stats
    s_sub_u32 s14, s14, 4
    s_and_b32 s15, s3, 1
    s_mul_i32 s15, s15, 14
    s_lshr_b32 s40, s14, 1
    s_add_u32 s40, s40, s15
    s_cmp_ge_u32 s40, 27
    s_cbranch_scc1 k2_end
    s_and_b32 s14, s14, 1
    s_and_b32 s3, s3, 6
    s_add_u32 s3, s3, s14
    s_lshl_b32 s3, s3, 2
    s_add_u32 s3, s3, s81
    v_lshrrev_b32 v2, 3, v1
    v_mul_u32_u24 v2, 3456, v2
    v_lshrrev_b32 v3, 2, v1
    v_and_b32 v3, 4, v3
    v_and_b32 v4, 7, v1
    v_xor_b32 v3, v3, v4
    v_lshl_add_u32 v2, v3, 4, v2
    v_add_u32 v3, {8*3456}, v2
    s_mul_i32 s41, s81, {16*3456}
    s_lshl_b32 s15, s40, 7
    s_add_u32 s41, s41, s15
    s_lshl_b32 s42, s81, 11
    s_lshl_b32 s43, s3, 10
    v_lshrrev_b32 v5, 5, v1
    v_and_b32 v6, 31, v1
    v_mul_u32_u24 v4, {H8_P}, v5
    v_lshl_add_u32 v4, v6, 4, v4
    s_waitcnt lgkmcnt(0)
    ''')
    k.srd(16, 4, D * F * 2); k.srd(20, 6, D * F * 2); k.srd(24, 12, H8_SZ, WS_H8)
    def wdma(p):
        mat, half = p >> 1, p & 1
        r = [f's_add_u32 m0, s42, {8192*mat+1024*half}',
             f'buffer_load_dwordx4 v{2+half}, s[{16+4*mat}:{19+4*mat}], s41 offen lds']
        if p == 3: r += [f's_add_u32 s41, s41, {64*3456}', 's_add_u32 s42, s42, 0x4000', 's_and_b32 s42, s42, 0xffff']
        return r
    def hld(u):
        return [f'buffer_load_dwordx4 {vr(H+8*u,4)}, v4, s[24:27], s43 offen',
                f'buffer_load_dwordx4 {vr(H+8*u+4,4)}, v4, s[24:27], s43 offen offset:512', f's_add_u32 s43, s43, {2*H8_P}']
    def nop_m0(r): return [r[0], 's_nop 0'] + r[1:]
    for st in range(-12, 0):
        if st >= -7: k('\n'.join(hld(st + 7)))
        k('\n'.join(nop_m0(wdma(st & 3))))
    k.srd(28, 12, F * 16 + 0x4000, WS_ST)
    k.srd(32, 12, HM_SZ, WS_HM)
    k(f'''
    v_lshlrev_b32 v7, 3, v6
    s_lshl_b32 s44, s40, 9
    s_add_u32 s44, s44, 0x4000
    s_add_u32 s45, s44, {F*8}
    s_lshl_b32 s46, s3, 9
    ''')
    for t in range(4): k(f'buffer_load_dwordx2 {vr(CS+2*t,2)}, v7, s[28:31], s{44+(t>>1)} offen offset:{256*(t&1)}')
    k(f'''
    v_bfe_u32 v8, v1, 2, 2
    v_lshl_add_u32 v9, v5, 3, v8
    v_lshlrev_b32 v9, 7, v9
    v_lshrrev_b32 v8, 1, v8
    v_lshl_add_u32 v9, v8, 6, v9
    v_bfe_u32 v8, v1, 4, 1
    v_lshl_add_u32 v9, v8, 5, v9
    v_and_b32 v8, 3, v1
    v_lshl_add_u32 v8, v8, 3, v9
    v_xor_b32 v9, 64, v8
    v_mov_b32 v{CS+8}, 0
    v_mov_b32 v{CS+9}, 0
    ''')
    for i in range(128): k(f'v_mov_b32 v{ACC+i}, 0')
    def ard(u):
        r = []
        for mat in range(2):
            for it in range(2):
                for n in range(2):
                    r.append(f'ds_read_b64_tr_b16 {vr(A+16*(u&1)+8*mat+4*it+2*n,2)}, v{8+it} '
                             f'offset:{16384*((u>>2)&1)+8192*mat+2048*(u&3)+512*n}')
        return r
    polls = [f'buffer_load_dwordx2 {vr(ST+2*j,2)}, v7, s[28:31], s46 offen offset:{256*j} sc0 sc1' for j in range(2)]
    k('s_waitcnt vmcnt(26)\ns_barrier')
    k.stamp(1)
    k('\n'.join(ard(0)))
    k('s_mov_b32 s47, 5\nk2_loop:')
    for u in range(8):
        k(f's_waitcnt vmcnt({21 if u else 19}) lgkmcnt(0)')
        if u & 3 == 3: k('s_barrier')
        if u == 7: k('v_xor_b32 v8, 0x8000, v8\nv_xor_b32 v9, 0x8000, v9')
        mf = [f'v_mfma_f32_32x32x16_bf16 {vr(ACC+16*(2*a+j),16)}, {vr(A+16*(u&1)+4*a,4)}, {vr(H+8*u+4*j,4)}, {vr(ACC+16*(2*a+j),16)}'
              for a in range(4) for j in range(2)]
        w, h = wdma(u & 3), hld((u - 1) & 7)
        fill = ard(u + 1) + h[:2] + [w[0], h[2]] + w[1:] + (polls if u == 0 else [])
        if u == 7: fill += ['s_add_u32 s47, s47, -1', 's_cmp_lg_u32 s47, 0']
        k('\n'.join(weave(mf, fill, per=3 if u in (3, 7) else 2)))
    k('s_cbranch_scc1 k2_loop')
    k.stamp(2)
    k(f'''
    k2_poll:
    s_waitcnt vmcnt(0)
    v_max_u32 v10, v{ST}, v{ST+1}
    v_max3_u32 v10, v10, v{ST+2}, v{ST+3}
    v_cmp_eq_u32 vcc, -1, v10
    s_cbranch_vccz k2_got
    s_add_u32 s47, s47, 1
    s_bitcmp1_b32 s47, 22
    s_cbranch_scc1 k2_got
    {polls[0]}
    {polls[1]}
    s_branch k2_poll
    k2_got:
    v_cmp_eq_u32 vcc, 0, v5
    s_mul_i32 s44, s3, {2*108*1024}
    s_lshl_b32 s45, s40, 12
    s_add_u32 s44, s44, s45
    s_add_u32 s45, s44, {108*1024}
    v_lshlrev_b32 v2, 4, v1
    s_waitcnt lgkmcnt(0)
    ''')
    for j in range(2):
        k(f'''
        v_cndmask_b32 v{H+4*j}, 0, v{ST+2*j+1}, vcc
        v_cndmask_b32 v{H+4*j+1}, 0, v{ST+2*j+1}, vcc
        v_mov_b32 v{H+4*j+2}, 0
        v_mov_b32 v{H+4*j+3}, 0
        v_mul_f32 v{ST+2*j+1}, v{ST+2*j}, v{ST+2*j}
        v_mul_f32 v{ST+2*j}, 0xbfb8aa3b, v{ST+2*j}
        v_rcp_f32 v{ST+2*j+1}, v{ST+2*j+1}
        ''')
    for j in range(2):
        for it in range(2):
            for mat in range(2):
                a = 2 * mat + it
                k(f'v_mfma_f32_32x32x16_bf16 {vr(ACC+16*(2*a+j),16)}, {vr(CS+2*a,4)}, {vr(H+4*j,4)}, {vr(ACC+16*(2*a+j),16)}')
    n = 0
    for j in range(2):
        for it in range(2):
            for jj in range(2):
                g, u_, T, P = ACC + 16 * (2 * it + j) + 8 * jj, ACC + 16 * (4 + 2 * it + j) + 8 * jj, A + 8 * (n & 1), H + 16 + 4 * n
                for i in range(0, 8, 2): k(f'v_pk_mul_f32 {vr(T+i,2)}, {vr(g+i,2)}, {vr(ST+2*j,2)} op_sel_hi:[1,0]')
                for i in range(8): k(f'v_exp_f32 v{T+i}, v{T+i}')
                for i in range(0, 8, 2): k(f'v_pk_mul_f32 {vr(g+i,2)}, {vr(g+i,2)}, {vr(u_+i,2)}')
                for i in range(0, 8, 2): k(f'v_pk_fma_f32 {vr(T+i,2)}, {vr(T+i,2)}, {vr(ST+2*j,2)}, {vr(ST+2*j,2)} op_sel:[0,1,1] op_sel_hi:[1,1,1]')
                for i in range(8): k(f'v_rcp_f32 v{T+i}, v{T+i}')
                for i in range(0, 8, 2): k(f'v_pk_mul_f32 {vr(g+i,2)}, {vr(g+i,2)}, {vr(T+i,2)}')
                for i in range(0, 8, 2): k(f'v_cvt_pk_bf16_f32 v{P+i//2}, v{g+i}, v{g+i+1}')
                k(f'buffer_store_dwordx4 {vr(P,4)}, v2, s[32:35], s{44+j} offen offset:{1024*(2*it+jj)}')
                n += 1
    k.stamp_out(3)
    k(f'''
    s_endpgm
    k2_stats:
    s_lshl_b32 s3, s3, 2
    s_add_u32 s3, s3, s14
    s_lshl_b32 s43, s3, 10
    s_mul_i32 s15, s81, {20*H8_P}
    s_add_u32 s43, s43, s15
    v_lshlrev_b32 v2, 4, v1
    s_waitcnt lgkmcnt(0)
    ''')
    k.srd(24, 12, H8_SZ, WS_H8); k.srd(28, 12, 0x4000, WS_ST)
    for i in range(20): k(f'buffer_load_dwordx4 {vr(16+4*i,4)}, v2, s[24:27], s43 offen\ns_add_u32 s43, s43, {H8_P}')
    k('s_mov_b32 s36, 0x3f803f80\nv_mov_b32 v6, 0\nv_mov_b32 v7, 0\nv_lshlrev_b32 v3, 3, v0')
    for i in range(20):
        k(f's_waitcnt vmcnt({19-i})')
        for j in range(4): k(f'v_dot2c_f32_bf16 v6, s36, v{16+4*i+j}\nv_dot2c_f32_bf16 v7, v{16+4*i+j}, v{16+4*i+j}')
    k(f'''
    s_nop 2
    ds_write_b64 v3, v[6:7]
    s_waitcnt lgkmcnt(0)
    s_barrier
    s_cmp_lg_u32 s81, 0
    s_cbranch_scc1 k2_end
    ds_read_b64 v[8:9], v3 offset:512
    ds_read2st64_b64 v[10:13], v3 offset0:2 offset1:3
    s_lshl_b32 s46, s3, 9
    s_waitcnt lgkmcnt(0)
    v_pk_add_f32 v[6:7], v[6:7], v[8:9]
    v_pk_add_f32 v[10:11], v[10:11], v[12:13]
    v_pk_add_f32 v[6:7], v[6:7], v[10:11]
    v_mul_f32 v6, {-1/640!r}, v6
    v_mul_f32 v7, {1/640!r}, v7
    v_fma_f32 v7, -v6, v6, v7
    v_max_f32 v7, 0, v7
    v_add_f32 v7, 0x3727c5ac, v7
    v_rsq_f32 v8, v7
    v_cvt_pk_bf16_f32 v9, v6, v6
    v_lshlrev_b32 v10, 16, v9
    v_sub_f32 v6, v6, v10
    v_cvt_pk_bf16_f32 v9, v10, v6
    v_min_u32 v8, -2, v8
    v_min_u32 v9, -2, v9
    buffer_store_dwordx2 v[8:9], v3, s[28:31], s46 offen sc0 sc1
    ''')
    k.stamp_out(1)
    k('k2_end:\ns_endpgm')
    return k, 256, (256, 256, LDS)
```

```python
from common import *
NS = 9
LDS = 98304
def gen():
    k = K('down_kernel', 3)
    k.stamp(0)
    RES, A, B, ACC = 12, 24, 40, 160
    k(f'''
    s_cmp_ge_u32 s2, 240
    s_cbranch_scc1 k3_end
    s_load_dwordx4 s[4:7], s[0:1], 72
    s_load_dwordx2 s[12:13], s[0:1], 96
    v_lshrrev_b32 v1, 6, v0
    s_and_b32 s3, s2, 7
    s_lshr_b32 s14, s2, 3
    v_readfirstlane_b32 s81, v1
    v_and_b32 v1, 63, v0
    s_mul_i32 s15, s14, 52
    s_lshr_b32 s15, s15, 8
    s_mul_i32 s40, s15, 5
    s_sub_u32 s40, s14, s40
    s_and_b32 s14, s3, 1
    s_mul_i32 s14, s14, 5
    s_add_u32 s40, s40, s14
    s_mul_i32 s15, s15, 3
    s_min_u32 s15, s15, 13
    s_lshr_b32 s3, s3, 1
    s_lshl_b32 s3, s3, 4
    s_add_u32 s3, s3, s15
    v_lshrrev_b32 v10, 3, v1
    v_mul_u32_u24 v2, 1280, v10
    v_lshrrev_b32 v3, 2, v1
    v_and_b32 v3, 4, v3
    v_and_b32 v11, 7, v1
    v_xor_b32 v3, v3, v11
    v_lshl_add_u32 v2, v3, 4, v2
    v_add_u32 v3, {8*1280-1024}, v2
    s_mul_i32 s41, s81, {432*1280}
    s_lshl_b32 s15, s40, 7
    s_add_u32 s41, s41, s15
    s_mul_i32 s42, s81, {NS*2048}
    s_mul_i32 s43, s3, {108*1024}
    s_mul_i32 s15, s81, {27*1024}
    s_add_u32 s43, s43, s15
    v_lshlrev_b32 v4, 4, v1
    v_add_u32 v5, {108*1024}, v4
    v_add_u32 v6, {2*108*1024}, v4
    s_waitcnt lgkmcnt(0)
    ''')
    k.srd(16, 4, D * F * 2); k.srd(24, 12, HM_SZ, WS_HM)
    def ld(s):
        return [f's_add_u32 m0, s42, {2048*s}',
                f'buffer_load_dwordx4 {vr(B+12*s,4)}, v4, s[24:27], s43 offen',
                f'buffer_load_dwordx4 v2, s[16:19], s41 offen lds',
                f'buffer_load_dwordx4 v3, s[16:19], s41 offen offset:1024 lds',
                f'buffer_load_dwordx4 {vr(B+12*s+4,4)}, v5, s[24:27], s43 offen',
                f'buffer_load_dwordx4 {vr(B+12*s+8,4)}, v6, s[24:27], s43 offen',
                f's_add_u32 s41, s41, {16*1280}', 's_add_u32 s43, s43, 1024']
    for s in range(NS - 1): k('\n'.join(ld(s)))
    k.srd(20, 6, S * D * 2); k.srd(28, 12, H8_SZ, WS_H8)
    k(f'''
    v_lshrrev_b32 v7, 5, v1
    v_bfe_u32 v8, v1, 2, 2
    v_lshl_add_u32 v9, v7, 2, v8
    v_lshlrev_b32 v9, 7, v9
    v_lshrrev_b32 v8, 1, v8
    v_lshl_add_u32 v9, v8, 6, v9
    v_bfe_u32 v8, v1, 4, 1
    v_lshl_add_u32 v9, v8, 5, v9
    v_and_b32 v8, 3, v1
    v_lshl_add_u32 v8, v8, 3, v9
    v_add_u32 v8, s42, v8
    v_xor_b32 v9, 64, v8
    ''')
    for i in range(96): k(f'v_mov_b32 v{ACC+i}, 0')
    def ard(s, buf):
        return [f'ds_read_b64_tr_b16 {vr(A+8*buf+4*it+2*n,2)}, v{8+it} offset:{2048*s+1024*n}' for it in range(2) for n in range(2)]
    k(f's_waitcnt vmcnt({5*(NS-2)})')
    k.stamp(1)
    k('\n'.join(ard(0, 0)))
    k('s_mov_b32 s47, 3\nk3_loop:')
    for s in range(NS):
        buf = s & 1
        k(f's_waitcnt vmcnt({5*(NS-3)}) lgkmcnt(0)')
        mf = [f'v_mfma_f32_32x32x16_bf16 {vr(ACC+16*(2*j+it),16)}, {vr(A+8*buf+4*it,4)}, {vr(B+12*s+4*j,4)}, {vr(ACC+16*(2*j+it),16)}'
              for it in range(2) for j in range(3)]
        l = ld((s - 1) % NS)
        if s == 0: l += ['s_cmp_eq_u32 s47, 1', 's_cselect_b32 s41, 0x40000000, s41', 's_cselect_b32 s43, 0x40000000, s43']
        if s < NS - 1:
            k('\n'.join(weave(mf, ard(s + 1, buf ^ 1) + l, per=3)))
        else:
            r = ard(0, 0)
            k('\n'.join(weave(mf[:3], l, per=3) + r[:2] + mf[3:] + r[2:]))
            k('s_add_u32 s47, s47, -1\ns_cmp_lg_u32 s47, 0\ns_cbranch_scc1 k3_loop')
    k.stamp(2)
    k(f'''
    s_lshl_b32 s44, s81, 3
    v_add_u32 v10, s44, v10
    v_mul_u32_u24 v2, {H8_P}, v11
    v_lshl_add_u32 v2, v10, 4, v2
    s_mul_i32 s44, s40, {8*H8_P}
    s_lshl_b32 s45, s3, 9
    s_add_u32 s44, s44, s45
    v_and_b32 v3, 31, v1
    v_and_b32 v4, 15, v1
    v_xor_b32 v4, v4, v7
    v_lshlrev_b32 v4, 4, v4
    v_lshl_add_u32 v3, v3, 8, v4
    s_mul_i32 s45, s81, 24576
    v_add_u32 v3, s45, v3
    s_waitcnt vmcnt(0) lgkmcnt(0)
    s_barrier
    ''')
    for j in range(3): k(f'buffer_load_dwordx4 {vr(RES+4*j,4)}, v2, s[28:31], s44 offen offset:{512*j}')
    for c in range(8):
        if c: k(f'v_xor_b32 v{A+c}, {32*c}, v3')
        for j in range(3):
            k(f'ds_write_b128 v{A+c if c else 3}, {vr(ACC+16*(2*j+(c>>2))+4*(c&3),4)} offset:{8192*j}')
    k(f'''
    v_lshlrev_b32 v4, 1, v11
    v_and_b32 v5, 15, v10
    v_xor_b32 v4, v4, v5
    v_lshlrev_b32 v4, 4, v4
    v_lshl_add_u32 v4, v10, 8, v4
    v_xor_b32 v5, 16, v4
    v_add_u32 v6, 49152, v4
    v_add_u32 v7, 49152, v5
    v_mul_u32_u24 v2, 1280, v10
    v_lshl_add_u32 v2, v11, 4, v2
    s_mul_i32 s44, s3, {32*1280}
    s_lshl_b32 s45, s40, 7
    s_add_u32 s44, s44, s45
    s_mov_b32 s36, 0xffff0000
    s_waitcnt lgkmcnt(0)
    s_barrier
    ''')
    for j in range(3):
        for w in range(4):
            for h in range(2):
                k(f'ds_read_b128 {vr(B+32*j+8*w+4*h,4)}, v{4+2*(w>>1)+h} offset:{24576*(w&1)+8192*j}')
    k('s_waitcnt vmcnt(0)')
    for j in range(3):
        r = B + 32 * j
        for i in range(4): k(f'v_lshlrev_b32 v{A+2*i}, 16, v{RES+4*j+i}\nv_and_b32 v{A+2*i+1}, s36, v{RES+4*j+i}')
        k(f's_waitcnt lgkmcnt({min(15, 8*(2-j))})')
        for i in range(0, 16, 2): k(f'v_pk_add_f32 {vr(r+i,2)}, {vr(r+i,2)}, {vr(r+16+i,2)}')
        for i in range(0, 8, 2): k(f'v_pk_add_f32 {vr(A+i,2)}, {vr(A+i,2)}, {vr(r+8+i,2)}')
        for i in range(0, 8, 2): k(f'v_pk_add_f32 {vr(r+i,2)}, {vr(r+i,2)}, {vr(A+i,2)}')
        for i in range(4): k(f'v_cvt_pk_bf16_f32 v{r+8+i}, v{r+2*i}, v{r+2*i+1}')
        k(f'buffer_store_dwordx4 {vr(r+8,4)}, v2, s[20:23], s44 offen\ns_add_u32 s44, s44, {32*1280}')
    k.stamp_out(3)
    k('k3_end:\ns_endpgm')
    return k, 256, (240, 256, LDS)
```

```python
import sys, common
common.STAMP = '--stamp' in sys.argv
import k0, k1, k2, k3
out = [a for a in sys.argv[1:] if not a.startswith('--')][0]
ks = [m.gen() for m in (k0, k1, k2, k3)]
for i in range(sys.argv.count('--null')):
    e = common.K(f'null{i}_kernel', 4 + i); e('s_endpgm'); ks.append((e, 8, (1, 64, 0)))
t = '; H3 block + SwiGLU block as four launches: transpose/prep, long convolution, up projection, down projection\n'
for k, vg, (g, b, l) in ks: t += f'; @launch kernel={k.name} grid=({g},1,1) block=({b},1,1) lds={l}\n'
t += '.amdgcn_target "amdgcn-amd-amdhsa--gfx950"\n.text\n'
for k, vg, _ in ks: t += k.text()
t += 'code_end:\n.section .rodata,"a"\n'
for k, vg, _ in ks: t += '.p2align 6\n' + k.desc(vg)
import re
for o, fl in (('sc1', ' sc1'), ('sc01', ' sc0 sc1'), ('nt', ' nt')):
    if common.opt(o): t = re.sub(r'(buffer_store_dwordx4 .*)', r'\1' + fl, t)
open(out, 'w').write(t)
```

```python
from common import *
def gen():
    k = K('prep_kernel', 0)
    k.stamp(0)
    k(f'''
    s_cmp_ge_u32 s2, 256
    s_cbranch_scc1 k0_end
    s_load_dwordx4 s[4:7], s[0:1], 0
    s_load_dwordx4 s[8:11], s[0:1], 16
    s_load_dwordx2 s[12:13], s[0:1], 96
    v_lshrrev_b32 v1, 6, v0
    s_and_b32 s3, s2, 7
    s_lshl_b32 s3, s3, 5
    v_readfirstlane_b32 s81, v1
    s_lshr_b32 s14, s2, 3
    s_add_u32 s3, s3, s14
    s_mul_i32 s14, s3, 10240
    s_waitcnt lgkmcnt(0)
    ''')
    k.srd(16, 4, S * D * 2)
    k('s_cmp_eq_u32 s81, 5\ns_cbranch_scc1 k0_stats')
    k.srd(20, 6, S * D * 2); k.srd(24, 8, S * D * 2); k.srd(28, 10, D * 8); k.srd(32, 12, UX_SZ, WS_UX)
    KR, VR, XR, SH, T, KF, U = 8, 19, 27, 36, 40, 48, 72
    k(f'''
    v_lshl_add_u32 v2, v0, 2, s14
    v_lshlrev_b32 v5, 4, v0
    v_add_u32 v3, 0xfffff100, v2
    v_add_u32 v4, 5120, v2
    buffer_load_dwordx4 {vr(SH,4)}, v5, s[28:31], 0 offen
    ''')
    for j in range(3): k(f'buffer_load_dword v{KR+j}, v3, s[20:23], 0 offen offset:{1280*j}')
    for base, srd in ((KR + 3, 20), (VR, 24), (XR, 16)):
        for j in range(8): k(f'buffer_load_dword v{base+j}, v{2 if j < 4 else 4}, s[{srd}:{srd+3}], 0 offen offset:{1280*(j&3)}')
    k(f'''
    s_lshr_b32 s15, s3, 1
    s_and_b32 s15, s15, 7
    s_lshl_b32 s15, s15, 4
    v_lshrrev_b32 v6, 1, v0
    v_and_b32 v7, 1, v0
    v_lshlrev_b32 v6, 7, v6
    v_lshl_or_b32 v6, v7, 5, v6
    v_xor_b32 v6, s15, v6
    v_xor_b32 v7, 16, v6
    v_xor_b32 v88, 64, v6
    v_xor_b32 v89, 0x50, v6
    v_and_b32 v1, 63, v0
    s_lshl_b32 s15, s81, 12
    v_lshl_add_u32 v90, v1, 4, s15
    v_lshrrev_b32 v91, 3, v1
    s_lshl_b32 s15, s81, 5
    v_add_u32 v91, s15, v91
    v_mul_u32_u24 v91, {UX_P}, v91
    v_and_b32 v1, 7, v1
    s_lshl_b32 s15, s3, 7
    v_lshl_add_u32 v1, v1, 4, s15
    v_add_u32 v91, v91, v1
    s_mov_b32 s36, 0xffff0000
    s_mov_b32 s37, 0x05040100
    s_mov_b32 s38, 0x07060302
    s_waitcnt vmcnt(27)
    ''')
    for j in range(4):
        for c in range(2):
            src = SH + 2 * c + (j >> 1)
            k(f'v_and_b32 v{T+2*j+c}, s36, v{src}' if j & 1 else f'v_lshlrev_b32 v{T+2*j+c}, 16, v{src}')
    k('s_waitcnt vmcnt(16)')
    for j in range(11):
        k(f'v_lshlrev_b32 v{KF+2*j}, 16, v{KR+j}\nv_and_b32 v{KF+2*j+1}, s36, v{KR+j}')
    for j in range(4):
        for t in range(8):
            a, b = vr(KF + 2 * (t + 3 - j), 2), vr(T + 2 * j, 2)
            k(f'v_pk_mul_f32 {vr(U+2*t,2)}, {a}, {b}' if j == 0 else f'v_pk_fma_f32 {vr(U+2*t,2)}, {a}, {b}, {vr(U+2*t,2)}')
    k('s_waitcnt vmcnt(8)')
    for t in range(8):
        k(f'v_lshlrev_b32 v{KF+2*t}, 16, v{VR+t}\nv_and_b32 v{KF+2*t+1}, s36, v{VR+t}')
    for t in range(8): k(f'v_pk_mul_f32 {vr(U+2*t,2)}, {vr(U+2*t,2)}, {vr(KF+2*t,2)}')
    P = 8
    for c in range(2):
        for i in range(4): k(f'v_cvt_pk_bf16_f32 v{P+4*c+i}, v{U+2*(7-2*i)+c}, v{U+2*(6-2*i)+c}')
    k(f'ds_write_b128 v6, {vr(P,4)}\nds_write_b128 v7, {vr(P+4,4)}\ns_waitcnt vmcnt(0)')
    for c in range(2):
        for i in range(4): k(f'v_perm_b32 v{KF+4*c+i}, v{XR+2*i+1}, v{XR+2*i}, s{37+c}')
    k(f'ds_write_b128 v88, {vr(KF,4)}\nds_write_b128 v89, {vr(KF+4,4)}')
    for i in range(4): k(f'ds_read_b128 {vr(U+4*i,4)}, v90 offset:{1024*i}')
    for i in range(4):
        k(f's_mov_b32 s15, {8*UX_P*i}\ns_waitcnt lgkmcnt({3-i})\nbuffer_store_dwordx4 {vr(U+4*i,4)}, v91, s[32:35], s15 offen')
    k.stamp_out(1)
    k('s_endpgm\nk0_stats:')
    k.srd(32, 12, 0x8000, WS_A)
    k(f'''
    v_and_b32 v1, 63, v0
    v_lshrrev_b32 v2, 3, v1
    v_and_b32 v3, 7, v1
    v_mul_u32_u24 v4, 1280, v2
    v_lshl_add_u32 v4, v3, 4, v4
    ''')
    for i in range(10): k(f'buffer_load_dwordx4 {vr(8+4*i,4)}, v4, s[16:19], s14 offen offset:{128*i}')
    k(f'''
    s_lshl_b32 s15, s3, 5
    v_lshl_add_u32 v5, v2, 2, s15
    v_and_b32 v3, 1, v3
    v_lshlrev_b32 v52, 1, v5
    v_lshl_add_u32 v52, v3, 2, v52
    v_add_u32 v52, 0x4000, v52
    v_mov_b32 v53, -1
    v_lshl_add_u32 v5, v3, 13, v5
    v_cmp_eq_u32 vcc, 1, v3
    s_mov_b32 s36, 0x3f803f80
    v_mov_b32 v6, 0
    v_mov_b32 v7, 0
    ''')
    ex = 0
    if opt('pfk'):
        k('s_load_dwordx2 s[20:21], s[0:1], 32\nv_lshlrev_b32 v54, 7, v1\ns_mul_i32 s15, s3, 10240\ns_waitcnt lgkmcnt(0)')
        k.srd(20, 20, S * D * 2)
        k('buffer_load_dword v55, v54, s[20:23], s15 offen\ns_add_u32 s15, s15, 2048\nbuffer_load_dword v56, v54, s[20:23], s15 offen')
        ex += 2
    if opt('pfc'):
        k('''s_getpc_b64 s[24:25]
        k0_pc:
        s_add_u32 s24, s24, conv_kernel-k0_pc
        s_addc_u32 s25, s25, 0
        s_mov_b32 s26, code_end-conv_kernel
        s_mov_b32 s27, 0x20000
        v_lshlrev_b32 v54, 7, v1
        s_bfe_u32 s15, s2, 0x10003
        s_lshl_b32 s15, s15, 13
        buffer_load_dword v57, v54, s[24:27], s15 offen''')
        ex += 1
    for i in range(10):
        k(f's_waitcnt vmcnt({9-i+ex})')
        for j in range(4): k(f'v_dot2c_f32_bf16 v6, s36, v{8+4*i+j}\nv_dot2c_f32_bf16 v7, v{8+4*i+j}, v{8+4*i+j}')
    k('buffer_store_dword v53, v52, s[32:35], 0 offen\ns_nop 2')
    for d in ('quad_perm:[1,0,3,2]', 'quad_perm:[2,3,0,1]', 'row_half_mirror'):
        k(f'v_add_f32_dpp v6, v6, v6 {d} row_mask:0xf bank_mask:0xf\nv_add_f32_dpp v7, v7, v7 {d} row_mask:0xf bank_mask:0xf\ns_nop 0')
    k(f'''
    v_mul_f32 v6, {1/640!r}, v6
    v_mul_f32 v7, {1/640!r}, v7
    v_fma_f32 v7, -v6, v6, v7
    v_max_f32 v7, 0, v7
    v_add_f32 v7, 0x3727c5ac, v7
    v_rsq_f32 v7, v7
    s_nop 0
    v_mul_f32 v6, -v6, v7
    v_cndmask_b32 v6, v7, v6, vcc
    buffer_store_dword v6, v5, s[32:35], 0 offen
    ''')
    k.stamp_out(1)
    k('k0_end:\ns_endpgm')
    return k, 96, (256, 384, 20480)
```
